```python
import torch

def _softmax(x, axis=-1):
    return torch.softmax(x, dim=axis)
def _gelu(x):
    return torch.nn.functional.gelu(x, approximate="tanh")
def _silu(x):
    return torch.nn.functional.silu(x)
def _sigmoid(x):
    return torch.sigmoid(x)
def _layernorm(x, axis=-1, eps=1e-5):
    m = x.mean(dim=axis, keepdim=True)
    v = x.var(dim=axis, keepdim=True, unbiased=False)
    return (x - m) / torch.sqrt(v + eps)
def _scatter_add(tgt, idx, src, axis=0):
    return tgt.clone().index_add_(axis, idx, src)
def _segment_sum(src, seg, n):
    out = torch.zeros((n,) + src.shape[1:], dtype=src.dtype)
    return out.index_add_(0, seg, src)
def _pad(x, pw):
    flat = tuple(v for pair in reversed(pw) for v in pair)
    return torch.nn.functional.pad(x, flat)

kernel_name = 'standalone__mha_block_cached__near_ridge'

def setup_inputs():

    _w = (lambda a: (lambda t: t.to(torch.bfloat16) if t.is_floating_point() else t)(torch.as_tensor(a)))
    B, Sq, D = 16, 192, 448
    H, Sk, Dh = 16, 512, 256
    return {
        "x": _w((lambda *s: torch.randn(*s, dtype=torch.bfloat16) * 0.8)(B, Sq, D)),
        "k_cache": _w((lambda *s: torch.randn(*s, dtype=torch.bfloat16) * 0.8)(B, H, Sk, Dh)),
        "v_cache": _w((lambda *s: torch.randn(*s, dtype=torch.bfloat16) * 0.05)(B, H, Sk, Dh)),
        "wq": _w((lambda *s: torch.randn(*s, dtype=torch.bfloat16) * 0.8)(D, H * Dh) * (D ** -0.5)),
        "wo": _w((lambda *s: torch.randn(*s, dtype=torch.bfloat16) * 0.05)(H * Dh, D) * ((H * Dh) ** -0.5)),
    }

def reference(x, k_cache, v_cache, wq, wo):
    B, Sq, D = x.shape
    H, Dh = 16, 256
    q = (lambda x, *d: x.permute(*d))((x @ wq).reshape(B, Sq, H, Dh), 0, 2, 1, 3)
    scores = torch.einsum("bhqd,bhkd->bhqk", q, k_cache) * (Dh ** -0.5)
    p = _softmax(scores, axis=-1)
    o = torch.einsum("bhqk,bhkd->bhqd", p, v_cache)
    return (lambda x, *d: x.permute(*d))(o, 0, 2, 1, 3).reshape(B, Sq, H * Dh) @ wo
```

```python
import re

def R(kind, lo, n=1):
    return [(kind, lo + i) for i in range(n)]

def rs(kind, lo, n=1):
    if n == 1:
        return f"{kind}{lo}"
    return f"{kind}[{lo}:{lo+n-1}]"

class Reg:
    def __init__(self, kind, lo, n=1):
        self.kind, self.lo, self.n = kind, lo, n
    def __str__(self):
        return rs(self.kind, self.lo, self.n)
    def regs(self):
        return R(self.kind, self.lo, self.n)
    def __getitem__(self, i):
        assert 0 <= i < self.n
        return Reg(self.kind, self.lo + i, 1)
    def sub(self, i, n):
        assert i + n <= self.n
        return Reg(self.kind, self.lo + i, n)

def V(lo, n=1): return Reg('v', lo, n)
def A(lo, n=1): return Reg('a', lo, n)
def S(lo, n=1): return Reg('s', lo, n)

def regs_of(x):
    if isinstance(x, Reg):
        return x.regs()
    if isinstance(x, str) and x in ('vcc', 'm0', 'scc', 'exec'):
        return [(x, 0)]
    return []

class I:
    __slots__ = ('text', 'kind', 'reads', 'writes', 'tag', 'cost', 'srcc', 'data')
    def __init__(self, text, kind, reads=(), writes=(), tag=None, cost=1, srcc=(), data=()):
        self.text, self.kind = text, kind
        self.reads, self.writes = list(reads), list(writes)
        self.tag, self.cost = tag, cost
        self.srcc = list(srcc)
        self.data = list(data)

def fl(lst):
    out = []
    for x in lst:
        out += regs_of(x)
    return out

TRANS = ('v_exp_f32', 'v_rcp_f32', 'v_log_f32', 'v_rsq_f32', 'v_sqrt_f32')

def valu(op, dst, *srcs, extra=""):
    kind = 'trans' if op in TRANS else 'valu'
    if op.startswith('v_permlane'):
        return I(f"{op} {dst}, {srcs[0]}", 'perm', fl([dst, srcs[0]]), fl([dst, srcs[0]]))
    if op in ('v_readfirstlane_b32',):
        return I(f"{op} {dst}, {srcs[0]}", 'rfl', fl(srcs), fl([dst]))
    rd = fl(srcs)
    if op in ('v_fmac_f32',):
        rd += fl([dst])
    return I(f"{op} {dst}, " + ", ".join(str(s) for s in srcs) + extra, kind, rd, fl([dst]), cost=2 if kind == 'trans' else 1)

def salu(op, dst, *srcs):
    rd = fl(srcs)
    wr = fl([dst]) if dst is not None else []
    ops = ([str(dst)] if dst is not None else []) + [str(s) for s in srcs]
    return I(f"{op} " + ", ".join(ops), 'salu', rd, wr)

def mfma(d, a, b, c):
    cs = regs_of(c)
    return I(f"v_mfma_f32_16x16x32_bf16 {d}, {a}, {b}, {c}", 'mfma', fl([a, b]), fl([d]), srcc=cs, cost=2)

def ds_read(op, dst, addr, off):
    assert 0 <= off < 65536, off
    return I(f"{op} {dst}, {addr} offset:{off}", 'ds', fl([addr]), fl([dst]))

def ds_write(op, addr, src, off):
    assert 0 <= off < 65536, off
    return I(f"{op} {addr}, {src} offset:{off}", 'ds', fl([addr, src]), [])

def buf_load(dst, voff, srd, soff, off=0, n=4, flags="", tag=None):
    op = {1: 'buffer_load_dword', 2: 'buffer_load_dwordx2', 4: 'buffer_load_dwordx4'}[n]
    assert 0 <= off < 4096
    o = f" offset:{off}" if off else ""
    return I(f"{op} {dst}, {voff}, {srd}, {soff} offen{o}{flags}", 'vmem', fl([voff, srd, soff]), fl([dst]), tag=tag)

def buf_dma(voff, srd, soff, off, tag, flags=""):
    assert 0 <= off < 4096
    o = f" offset:{off}" if off else ""
    return I(f"buffer_load_dwordx4 {voff}, {srd}, {soff} offen{o}{flags} lds", 'dma', fl([voff, srd, soff, 'm0']), [], tag=tag, cost=2)

def buf_store(src, voff, srd, soff, off=0, n=4, flags="", tag=None):
    op = {1: 'buffer_store_dword', 2: 'buffer_store_dwordx2', 4: 'buffer_store_dwordx4'}[n]
    o = f" offset:{off}" if off else ""
    return I(f"{op} {src}, {voff}, {srd}, {soff} offen{o}{flags}", 'store', fl([src, voff, srd, soff]), [], tag=tag, data=fl([src]) if n >= 3 else [], cost=2)

def raw(text, kind='misc', reads=(), writes=()):
    return I(text, kind, reads, writes)

def wait_tags(*tags):
    return I("", 'waittag', tag=set(tags))

def wait_all_lgkm():
    return I("s_waitcnt lgkmcnt(0)", 'waitlgkm0')
def wait_all_vm():
    return I("s_waitcnt vmcnt(0)", 'waitvm0')
def label(name):
    return I(f"{name}:", 'label')
def fence_states(n):
    return I("", 'fence', tag=n)

VALUK = ('valu', 'trans', 'perm', 'rfl')

def finalize(stream, stats=None):
    out = []
    pos = 0
    lg = []
    vm = []
    w_valu = {}; w_trans = {}; w_mfma = {}; r_srcc = {}; w_salu = {}; st_data = {}
    mfma_d = {}
    nnop = 0; nwait = 0
    def emit(text, states=1):
        nonlocal pos
        out.append(text); pos += states
    def do_wait(vmn, lgn):
        nonlocal nwait
        parts = []
        if vmn is not None:
            assert vmn <= 63
            parts.append(f"vmcnt({vmn})"); del vm[:len(vm) - vmn]
        if lgn is not None:
            assert lgn <= 15
            parts.append(f"lgkmcnt({lgn})"); del lg[:len(lg) - lgn]
        if parts:
            emit("s_waitcnt " + " ".join(parts)); nwait += 1
    for ins in stream:
        k = ins.kind
        if k == 'label':
            out.append(ins.text); continue
        if k == 'waittag':
            idx = -1
            for i, (d, t) in enumerate(vm):
                if t in ins.tag: idx = i
            if idx >= 0:
                do_wait(min(63, len(vm) - 1 - idx), None)
            continue
        if k == 'waitlgkm0':
            lg.clear(); emit(ins.text); continue
        if k == 'waitvm0':
            vm.clear(); emit(ins.text); continue
        if k == 'fence':
            n = ins.tag
            while n > 0:
                m = min(n, 16); emit(f"s_nop {m-1}", m); n -= m
            continue
        touched = set(ins.reads) | set(ins.writes) | set(ins.srcc)
        vmn = lgn = None
        for i, d in enumerate(lg):
            if d & touched: lgn = len(lg) - 1 - i
        for i, (d, t) in enumerate(vm):
            if d & touched: vmn = min(63, len(vm) - 1 - i)
        if k == 'ds' and len(lg) >= 15 and (lgn is None or lgn > 14):
            lgn = 14
        if k in ('vmem', 'dma', 'store') and len(vm) >= 63 and (vmn is None or vmn > 62):
            vmn = 62
        do_wait(vmn, lgn)
        need = 0
        def req(tbl, regs, n):
            nonlocal need
            for r in regs:
                if r in tbl:
                    need = max(need, tbl[r] + n + 1 - pos)
        allreads = list(ins.reads)
        if k == 'mfma':
            req(w_valu, allreads + ins.srcc, 2)
            req(w_mfma, allreads, 8)
            for r in ins.srcc:
                if r in w_mfma and mfma_d.get(r) != tuple(ins.srcc):
                    need = max(need, w_mfma[r] + 6 + 1 - pos)
            if not ins.srcc:
                req(w_mfma, ins.writes, 6)
        elif k in VALUK:
            req(w_mfma, allreads + ins.writes, 8)
            req(r_srcc, ins.writes, 3)
            if k != 'trans':
                req(w_trans, allreads, 1)
            if k == 'perm':
                req(w_valu, allreads, 2)
            if k == 'rfl':
                req(w_valu, allreads, 1)
            req(w_valu, [r for r in allreads if r[0] in ('s', 'vcc')], 2)
            req(st_data, ins.writes, 2)
        elif k in ('ds', 'vmem', 'dma', 'store'):
            req(w_mfma, allreads + ins.writes, 8)
            req(w_valu, [r for r in allreads if r[0] == 's'], 5)
            if k == 'dma':
                req(w_salu, [('m0', 0)], 1)
            req(st_data, ins.writes, 1)
        elif k == 'salu':
            req(w_valu, [r for r in allreads if r[0] in ('s', 'vcc')], 3)
        while need > 0:
            m = min(need, 16); emit(f"s_nop {m-1}", m); need -= m; nnop += 1
        p = pos
        emit(ins.text)
        if k == 'mfma':
            for r in ins.writes:
                w_mfma[r] = p; mfma_d[r] = tuple(ins.writes); w_valu.pop(r, None); w_trans.pop(r, None)
            for r in ins.srcc: r_srcc[r] = p
        elif k in VALUK:
            for r in ins.writes:
                w_valu[r] = p; w_mfma.pop(r, None)
                if k == 'trans': w_trans[r] = p
                else: w_trans.pop(r, None)
        elif k == 'salu':
            for r in ins.writes:
                w_salu[r] = p; w_valu.pop(r, None)
        if k == 'ds':
            lg.append(set(ins.writes))
            for r in ins.writes:
                w_mfma.pop(r, None); w_valu.pop(r, None); w_trans.pop(r, None)
        if k in ('vmem', 'dma', 'store'):
            vm.append((set(ins.writes), ins.tag))
            for r in ins.writes:
                w_mfma.pop(r, None); w_valu.pop(r, None); w_trans.pop(r, None)
            for r in ins.data: st_data[r] = p
    if stats is not None:
        stats['nops'] = nnop; stats['waits'] = nwait; stats['n'] = len(out)
    return out
```

```python
import sys, struct, math
from asmlib import *

OPT = dict(stamps=False, D=4, warm=True, nocompute=False, kv_nt=False, T=8.0, k_start=3)
for a in sys.argv[2:]:
    k, v = a.split('=')
    OPT[k] = type(OPT[k])(eval(v))

KNAME = "standalone__mha_block_cached__near_ridge_kernel"
RNAME = "mha_reduce_kernel"
SLOT = 16384
NSLOT = 10
def f2u(x): return struct.unpack('<I', struct.pack('<f', x))[0]
CSC = math.log2(math.e) / 16.0

sX, sK, sV, sWQ, sWO, sWS = S(20,4), S(24,4), S(28,4), S(32,4), S(36,4), S(40,4)
sDBG = S(44,4)
s_w4096, s_soff, s_c, s_T, s_x1, s_x2, s_soff2, s_b, s_h, s_w = [S(i) for i in range(48, 58)]
s_ret = S(58,2)
s_t0, s_t1 = S(60), S(61)
s_pc = S(62,2)
STAMP0 = 64

vKA = [V(4+i) for i in range(4)]
vVA = [V(8+i) for i in range(8)]
vKVd = [V(16+i) for i in range(4)]
vWQd = [V(20+i) for i in range(4)]
vWOd = vWQd
vXo = V(24)
vWSo = V(24)
vM = [V(25+i) for i in range(3)]
vNM = [V(28+i) for i in range(3)]
vT = V(31)
QA = 32
def grp_lo(i): return V(QA + 8*i, 4)
def grp_hi(i): return V(QA + 8*i + 4, 4)
def grp(i): return V(QA + 8*i, 8)
NB = OPT['D'] + 1
AB = [V(224 + 4*i, 4) for i in range(NB)]
assert 224 + 4*NB <= 244
vWQA = [V(244+i) for i in range(8)]
vWOA = [V(252+i) for i in range(4)]
def Qacc(dt, qt): return V(QA + 8*((dt>>1)*3+qt) + 4*(dt&1), 4)
def QF(p, qt): return grp_lo(p*3+qt)
def Sreg(buf, kt, qt): return grp_hi(buf*6 + kt*3 + qt)
def Preg(qt): return grp_hi(12+qt)
vTM = [grp_hi(15)[i] for i in range(3)]
vD = [grp_hi(16)[i] for i in range(4)]
vRL = [V(244+i) for i in range(3)]
CT = [V(QA + 8*17 + 4, 4), V(QA + 8*18 + 4, 4), V(QA + 8*19 + 4, 4), V(QA + 8*20 + 4, 4)]
def SD(qt): return grp_hi(21+qt)
def Acc3(st, ntl, qt): return grp_hi(st*6 + ntl*3 + qt)
def Oacc(dt, qt): return A((dt*3+qt)*4, 4)
def Xf(ks, qt): return A((ks*3+qt)*4, 4)
def Lacc(qt): return A(192 + 4*qt, 4)
aONES = A(204, 4)

class Gen:
    def __init__(self):
        self.st = []
        self.nstamp = 0
    def e(self, *ins):
        for i in ins:
            if isinstance(i, list): self.st += i
            else: self.st.append(i)
    def stamp(self):
        if not OPT['stamps']: return []
        k = self.nstamp; self.nstamp += 1
        assert k < 16
        return [raw(f"s_memrealtime s[{STAMP0+2*k}:{STAMP0+2*k+1}]"), wait_all_lgkm()]

def srd(dst, lo, hi, nrec):
    return [salu('s_mov_b32', dst[0], lo), salu('s_and_b32', dst[1], hi, '0xffff'),
            salu('s_mov_b32', dst[2], nrec), salu('s_mov_b32', dst[3], '0x20000')]

def add64(dlo, dhi, lo, hi, off):
    return [salu('s_add_u32', dlo, lo, off), salu('s_addc_u32', dhi, hi, 0)]

def gen_main():
    G = Gen(); e = G.e
    D = OPT['D']
    e(raw("s_cmp_ge_u32 s2, 256"), raw("s_cbranch_scc1 L_end"))
    e(G.stamp())
    e(raw("s_load_dwordx16 s[4:19], s[0:1], 0"))
    e(raw(f"s_getpc_b64 {s_pc}", 'salu', [], s_pc.regs()), label("L_pc"))
    v1, v2, v3 = V(1), V(2), V(3)
    lane, i16, g, rp, c4, hsw = V(232), V(233), V(234), V(235), V(236), V(237)
    l5, p32 = V(238), V(239)
    e(valu('v_lshrrev_b32', v1, 6, V(0)))
    e(valu('v_and_b32', lane, 63, V(0)))
    e(valu('v_readfirstlane_b32', s_w, v1))
    e(valu('v_and_b32', i16, 15, lane), valu('v_lshrrev_b32', g, 4, lane))
    e(valu('v_bfe_u32', rp, lane, 2, 2), valu('v_and_b32', c4, 3, lane), valu('v_bfe_u32', hsw, lane, 2, 3))
    e(valu('v_lshrrev_b32', l5, 5, lane), valu('v_and_b32', p32, 31, lane))
    e(salu('s_and_b32', s_t0, S(2), 1), salu('s_lshl_b32', s_t0, s_t0, 3))
    e(salu('s_lshr_b32', s_t1, S(2), 3), salu('s_and_b32', s_t1, s_t1, 7), salu('s_add_u32', s_b, s_t0, s_t1))
    e(salu('s_and_b32', s_t0, S(2), 6), salu('s_lshl_b32', s_t0, s_t0, 1))
    e(salu('s_lshr_b32', s_t1, S(2), 6), salu('s_add_u32', s_h, s_t0, s_t1))
    e(salu('s_lshl_b32', s_w4096, s_w, 12))
    e(salu('s_mov_b32', s_c, hex(f2u(CSC))), salu('s_mov_b32', s_T, hex(f2u(OPT['T']))))
    e(salu('s_mov_b32', s_x1, 16*896), salu('s_mov_b32', s_x2, 32*896))
    e(salu('s_and_b32', s_t0, s_w, 1), salu('s_lshl_b32', s_t0, s_t0, 3))
    e(salu('s_lshl_b32', s_t1, s_w, 16))
    for jj in range(4):
        e(valu('v_lshlrev_b32', v1, 1, l5))
        e(valu('v_add_u32', v1, ((2*jj) & 3) << 1, v1))
        e(valu('v_or_b32', v1, s_t0, v1))
        e(valu('v_xor_b32', v1, v1, p32))
        e(valu('v_lshlrev_b32', v1, 4, v1))
        e(valu('v_lshlrev_b32', v2, 13, l5))
        e(valu('v_add3_u32', v1, v1, v2, s_t1))
        e(valu('v_add_u32', vWQd[jj], 2*jj*8192 - jj*1024, v1))
    e(salu('s_mul_i32', s_t0, s_w, 48*896))
    e(valu('v_mul_u32_u24', v1, 896, i16), valu('v_lshlrev_b32', v2, 4, g), valu('v_add3_u32', vXo, v1, v2, s_t0))
    for jj in range(4):
        e(valu('v_lshlrev_b32', v1, 1, l5))
        e(valu('v_add_u32', v1, (2*jj) << 1, v1))
        e(valu('v_xor_b32', v1, v1, p32))
        e(valu('v_lshlrev_b32', v1, 4, v1))
        e(valu('v_lshlrev_b32', v2, 9, l5))
        e(valu('v_add3_u32', vKVd[jj], v1, v2, s_w4096))
    e(wait_all_lgkm())
    e(salu('s_mul_i32', s_t0, s_b, 172032)); e(add64(S(4), S(5), S(4), S(5), s_t0)); e(srd(sX, S(4), S(5), 172032))
    e(salu('s_lshl_b32', s_t0, s_h, 9)); e(add64(S(10), S(11), S(10), S(11), s_t0))
    e(srd(sWQ, S(10), S(11), 448*8192)); e(salu('s_sub_u32', sWQ[2], sWQ[2], s_t0))
    e(salu('s_lshl_b32', s_t0, s_b, 4), salu('s_add_u32', s_t0, s_t0, s_h), salu('s_lshl_b32', s_t0, s_t0, 18))
    e(add64(S(6), S(7), S(6), S(7), s_t0)); e(srd(sK, S(6), S(7), 262144))
    e(add64(S(8), S(9), S(8), S(9), s_t0)); e(srd(sV, S(8), S(9), 262144))

    kvflag = " nt" if OPT['kv_nt'] else ""
    def dma_tile(name):
        t = tiles[name]
        ins = [salu('s_add_u32', 'm0', s_w4096, t['slot']*SLOT), salu('s_mov_b32', s_soff, t['soff'])]
        for jj in range(4):
            ins.append(buf_dma(t['voff'][jj], t['srd'], s_soff, jj*1024, name, flags=t.get('flags', "")))
        return ins
    tiles = {}
    for j in range(14):
        tiles[f"wq{j}"] = dict(srd=sWQ, soff=j*32*8192, voff=vWQd, slot=6 + ((j+2) % 4))
    stream = ["K0"]
    for t in range(15): stream += [f"K{t+1}", f"V{t}"]
    stream += ["V15"]
    stream += [f"wo{v}" for v in range(14)]
    for u, name in enumerate(stream):
        if name[0] == 'K': tiles[name] = dict(srd=sK, soff=int(name[1:])*SLOT, voff=vKVd, flags=kvflag)
        elif name[0] == 'V': tiles[name] = dict(srd=sV, soff=int(name[1:])*SLOT, voff=vKVd, flags=kvflag)
        else:
            v = int(name[2:]); tiles[name] = dict(srd=sWO, soff=(v & 1)*128*896 + (v >> 1)*128, voff=vWOd)
        tiles[name]['slot'] = u % NSLOT
    def xload(ks):
        return [buf_load(Xf(ks, qt), vXo, sX, [0, s_x1, s_x2][qt], ks*64) for qt in range(3)]

    e(dma_tile("wq0")); e(xload(0)); e(dma_tile("wq1")); e(xload(1)); e(dma_tile("wq2")); e(xload(2))
    if OPT['warm']:
        e(salu('s_lshr_b32', s_t0, S(2), 3), salu('s_and_b32', s_t0, s_t0, 1), salu('s_lshl_b32', s_t0, s_t0, 2),
          salu('s_add_u32', s_t0, s_t0, s_w), salu('s_lshl_b32', s_t0, s_t0, 13))
        e(valu('v_lshlrev_b32', v1, 7, lane), valu('v_add_u32', v1, s_t0, v1))
        e(valu('v_min_u32', v1, 'L_textend-L_pc-4', v1))
        e(I(f"global_load_dword v3, v1, {s_pc}", 'vmem', fl([v1, s_pc]), fl([v3])))
    e(xload(3)); e(xload(4))
    nstart = OPT['k_start']
    for u in range(nstart): e(dma_tile(stream[u]))
    next_stream = nstart
    e(salu('s_mul_i32', s_t0, s_h, 229376)); e(add64(S(12), S(13), S(12), S(13), s_t0)); e(srd(sWO, S(12), S(13), 229376))
    e(salu('s_mul_i32', s_t0, s_b, 168*16384), salu('s_lshl_b32', s_t1, s_h, 10), salu('s_add_u32', s_t0, s_t0, s_t1))
    if OPT['stamps']:
        e(add64(S(16), S(17), S(18), S(19), 64 << 20)); e(srd(sDBG, S(16), S(17), 1 << 20))
    e(add64(S(18), S(19), S(18), S(19), s_t0)); e(srd(sWS, S(18), S(19), 168*16384)); e(salu('s_sub_u32', sWS[2], sWS[2], s_t1))
    for m in range(4):
        e(valu('v_and_b32', v1, 7, i16), valu('v_lshlrev_b32', v1, 1, v1))
        e(valu('v_or_b32', v2, m << 2, g), valu('v_xor_b32', v1, v1, v2), valu('v_lshlrev_b32', v1, 4, v1))
        e(valu('v_lshl_add_u32', vKA[m], i16, 9, v1))
    for s7 in range(8):
        e(valu('v_xor_b32', v1, s7, hsw), valu('v_lshlrev_b32', v1, 5, v1), valu('v_lshl_add_u32', v1, c4, 3, v1))
        e(valu('v_lshl_add_u32', v1, rp, 9, v1))
        e(valu('v_lshl_add_u32', vVA[s7], g, 11, v1))
        e(valu('v_lshl_add_u32', v1, g, 12, v1), valu('v_add_u32', vWQA[s7], 6*SLOT, v1))
    for s4 in range(4):
        e(valu('v_bfe_u32', v1, lane, 3, 2), valu('v_xor_b32', v1, s4, v1), valu('v_lshlrev_b32', v1, 5, v1))
        e(valu('v_lshl_add_u32', v1, c4, 3, v1))
        e(valu('v_lshrrev_b32', v2, 2, lane), valu('v_lshl_add_u32', vWOA[s4], v2, 7, v1))
    e(valu('v_mov_b32', v1, '0x3f803f80'))
    for i in range(4): e(valu('v_accvgpr_write_b32', aONES[i], v1))
    e(G.stamp())

    win = {'K': 0, 'V': 0, 'WO': 0, 'WQ': 6*SLOT}
    aset = {'K': vKA, 'V': vVA, 'WO': vWOA, 'WQ': vWQA}
    def lds_off(kind, slot, inner, pre):
        a = slot*SLOT + inner
        if not (0 <= slot*SLOT - win[kind] and slot*SLOT + SLOT - win[kind] <= 65536):
            nb = (slot*SLOT) & ~0xffff
            d = nb - win[kind]
            for r in aset[kind]:
                pre.append(valu('v_add_u32', r, d & 0xffffffff, r))
            win[kind] = nb
        return a - win[kind]

    F = []
    def rd_tr(kind, tile, aidx, off0, off1):
        def f(buf):
            pre = []
            o0 = lds_off(kind, tiles[tile]['slot'], off0, pre)
            o1 = lds_off(kind, tiles[tile]['slot'], off1, pre)
            a = aset[kind][aidx]
            return pre + [ds_read('ds_read_b64_tr_b16', buf.sub(0, 2), a, o0), ds_read('ds_read_b64_tr_b16', buf.sub(2, 2), a, o1)]
        return f
    def rd_128(kind, tile, aidx, off):
        def f(buf):
            pre = []
            o = lds_off(kind, tiles[tile]['slot'], off, pre)
            return pre + [ds_read('ds_read_b128', buf, aset[kind][aidx], o)]
        return f
    segstart = {}
    def seg(name): segstart[name] = len(F)
    for ks in range(14):
        seg(f"P1_{ks}")
        for dt in range(16):
            F.append(dict(rd=rd_tr('WQ', f"wq{ks}", dt & 7, (dt >> 3)*256, (dt >> 3)*256 + 2048), tiles=[f"wq{ks}"],
                          mf=(lambda buf, ks=ks, dt=dt: [mfma(Qacc(dt, qt), buf, Xf(ks, qt), Qacc(dt, qt) if ks else 0) for qt in range(3)])))
    def qk_seg(t):
        seg(f"QK{t}")
        for ks in range(8):
            for kt in range(2):
                F.append(dict(rd=rd_128('K', f"K{t}", ks & 3, (ks >> 2)*256 + kt*8192), tiles=[f"K{t}"],
                              mf=(lambda buf, ks=ks, kt=kt, t=t: [mfma(Sreg(t & 1, kt, qt), buf, QF(ks, qt), Sreg(t & 1, kt, qt) if ks else 0) for qt in range(3)])))
    def pv_seg(t):
        seg(f"PV{t}")
        F.append(dict(rd=None, tiles=[], mf=(lambda buf, t=t: [mfma(Lacc(qt), aONES, Preg(qt), Lacc(qt) if t else 0) for qt in range(3)])))
        for dt in range(16):
            F.append(dict(rd=rd_tr('V', f"V{t}", dt & 7, (dt >> 3)*256, (dt >> 3)*256 + 8192), tiles=[f"V{t}"],
                          mf=(lambda buf, dt=dt, t=t: [mfma(Oacc(dt, qt), buf, Preg(qt), Oacc(dt, qt) if t else 0) for qt in range(3)])))
    qk_seg(0)
    for t in range(15):
        qk_seg(t+1); pv_seg(t)
    pv_seg(15)
    for n7 in range(7):
        for st in range(2):
            seg(f"P3_{n7}_{st}")
            for ks in range(8):
                for ntl in range(2):
                    tl = f"wo{2*n7 + (ks >> 2)}"
                    F.append(dict(rd=rd_tr('WO', tl, st*2 + ntl, (ks & 3)*4096, (ks & 3)*4096 + 2048), tiles=[f"wo{2*n7}", f"wo{2*n7+1}"],
                                  mf=(lambda buf, ks=ks, ntl=ntl, st=st: [mfma(Acc3(st, ntl, qt), buf, QF(ks, qt), Acc3(st, ntl, qt) if ks else 0) for qt in range(3)])))
    seg("END")
    NF = len(F)
    def gap(segname, fragoff=0, j=0):
        return (segstart[segname] + fragoff)*3 + j
    last_use = {}
    for n, f in enumerate(F):
        for t in f['tiles']: last_use[t] = n

    QV = []
    QD = []
    def qv(ins, ear, dl):
        for i in ins: QV.append(([i] if not isinstance(i, list) else i, ear, dl))
    for p in range(8):
        ins = []
        for qt in range(3):
            gq = grp(p*3+qt)
            for k in range(4): ins.append(valu('v_cvt_pk_bf16_f32', gq[k], gq[2*k], gq[2*k+1]))
        for qt in range(3):
            gq = grp(p*3+qt)
            ins += [valu('v_permlane32_swap_b32', gq[0], gq[2]), valu('v_permlane32_swap_b32', gq[1], gq[3])]
        for qt in range(3):
            gq = grp(p*3+qt)
            ins += [valu('v_permlane16_swap_b32', gq[0], gq[2]), valu('v_permlane16_swap_b32', gq[1], gq[3])]
        qv(ins, gap("P1_13", 2*p+1, 2) + 4, gap("QK0", max(0, 2*p-1)))
    def tmax_ins(t):
        ins = []
        for step in range(4):
            for qt in range(3):
                s = [Sreg(t & 1, kt, qt)[r] for kt in range(2) for r in range(4)]
                if step == 0: ins.append(valu('v_max3_f32', vTM[qt], s[0], s[1], s[2]))
                elif step < 3: ins.append(valu('v_max3_f32', vTM[qt], vTM[qt], s[2*step+1], s[2*step+2]))
                else: ins.append(valu('v_max_f32', vTM[qt], vTM[qt], s[7]))
        return ins
    def xlane_max():
        ins = []
        for op in ('v_permlane32_swap_b32', 'v_permlane16_swap_b32'):
            for qt in range(3): ins.append(valu('v_mov_b32', vD[qt], vTM[qt]))
            for qt in range(3): ins.append(valu(op, vD[qt], vTM[qt]))
            for qt in range(3): ins.append(valu('v_max_f32', vTM[qt], vTM[qt], vD[qt]))
        return ins
    def exp_ins(t):
        ins = []
        batches = [(qt, kt) for qt in range(3) for kt in range(2)]
        prev = None
        for (qt, kt) in batches:
            s = Sreg(t & 1, kt, qt)
            for r in range(4): ins.append(valu('v_fma_f32', s[r], s[r], s_c, vNM[qt]))
            if prev: ins += prev
            for r in range(4): ins.append(valu('v_exp_f32', s[r], s[r]))
            prev = [valu('v_cvt_pk_bf16_f32', Preg(qt)[2*kt + k], s[2*k], s[2*k+1]) for k in range(2)]
        ins += prev
        return ins
    ins = tmax_ins(0) + xlane_max()
    for qt in range(3): ins += [valu('v_mov_b32', vM[qt], vTM[qt]), valu('v_mul_f32', vNM[qt], s_c, vTM[qt])]
    for qt in range(3): ins += [valu('v_sub_f32', vNM[qt], 0, vNM[qt])]
    qv(ins, gap("QK1") + 3, gap("PV0"))
    for t in range(16):
        ear = gap(f"QK{t+1}") - 1 if t < 15 else gap("PV15") - 1
        qv(exp_ins(t), ear, gap(f"PV{t}"))
        if t < 15:
            nxt = f"QK{t+2}" if t < 14 else "PV15"
            ins = tmax_ins(t+1)
            for qt in range(3): ins.append(valu('v_fma_f32', vD[qt], vTM[qt], s_c, vNM[qt]))
            ins.append(valu('v_max3_f32', vD[3], vD[0], vD[1], vD[2]))
            ins.append(valu('v_cmp_lt_f32', 'vcc', s_T, vD[3]))
            qv(ins, gap(f"PV{t}") + 3, gap(nxt))
            blk = [raw(f"s_cbranch_vccz L_skip{t}"), raw(f"s_call_b64 {s_ret}, L_rescale"), label(f"L_skip{t}")]
            if t in (3, 7, 11): blk += G.stamp()
            QV.append((blk, gap(nxt) - 1, gap(nxt)))
    lane2 = vD
    t0, t1 = V(1), V(2)
    ins = [valu('v_and_b32', V(3), 63, V(0))]
    ins += [valu('v_lshrrev_b32', t0, 3, V(3)),
            valu('v_bfe_u32', t1, V(3), 4, 2), valu('v_lshlrev_b32', t1, 1, t1),
            valu('v_and_b32', vT, 7, V(3)), valu('v_xor_b32', t1, t1, vT), valu('v_lshlrev_b32', t1, 4, t1),
            valu('v_mul_u32_u24', t0, 896, t0), salu('s_mul_i32', s_t0, s_w, 32*896), valu('v_add3_u32', t0, t0, t1, s_t0)]
    for jj in range(4): ins.append(valu('v_add_u32', vWOd[jj], jj*(8*896 - 1024), t0))
    ins += [salu('s_mul_i32', s_t0, s_w, 42*16384), valu('v_lshlrev_b32', t0, 4, V(3)), valu('v_add_u32', vWSo, s_t0, t0)]
    wo_setup = ins
    ins = []
    for qt in range(3): ins.append(valu('v_accvgpr_read_b32', vRL[qt], Lacc(qt)[0]))
    for qt in range(3): ins.append(valu('v_rcp_f32', vRL[qt], vRL[qt]))
    qv(ins, gap("PV15", 0, 2) + 4, gap("P3_0_0"))
    cti = 0
    for ks in range(8):
        for qt in range(3):
            ta, tb = CT[cti % 4], CT[(cti+1) % 4]; cti += 2
            ins = [valu('v_accvgpr_read_b32', ta[r], Oacc(2*ks, qt)[r]) for r in range(4)]
            ins += [valu('v_accvgpr_read_b32', tb[r], Oacc(2*ks+1, qt)[r]) for r in range(4)]
            of = QF(ks, qt)
            ins += [valu('v_cvt_pk_bf16_f32', of[0], ta[0], ta[1]), valu('v_cvt_pk_bf16_f32', of[1], ta[2], ta[3]),
                    valu('v_cvt_pk_bf16_f32', of[2], tb[0], tb[1]), valu('v_cvt_pk_bf16_f32', of[3], tb[2], tb[3])]
            qv(ins, gap("PV15", 1 + 2*ks + 1, 2) + 4, gap("P3_0_0", 2*ks))
    p3segs = [f"P3_{n7}_{st}" for n7 in range(7) for st in range(2)] + ["END", "END"]
    for i in range(14):
        n7, st = i >> 1, i & 1
        ins = []
        for qt in range(3):
            for ntl in range(2):
                a = Acc3(st, ntl, qt)
                for r in range(4): ins.append(valu('v_mul_f32', a[r], a[r], vRL[qt]))
            for ntl in range(2):
                a = Acc3(st, ntl, qt)
                for k in range(2): ins.append(valu('v_cvt_pk_bf16_f32', SD(qt)[2*ntl + k], a[2*k], a[2*k+1]))
            ins.append([salu('s_mov_b32', s_soff2, (i*3 + qt)*16384), buf_store(SD(qt), vWSo, sWS, s_soff2)])
        qv(ins, gap(p3segs[i+1]) + 3 if i < 13 else gap("END"), gap(p3segs[i+2]) if i < 12 else gap("END") + 10)

    RF = [n for n, f in enumerate(F) if f['rd'] is not None]
    rpos = {n: i for i, n in enumerate(RF)}
    synced = set()
    freed = set()
    state = dict(next_stream=next_stream, next_wq=3, next_x=5, wo_setup_done=False)
    slot_busy = {}
    for nm in ["wq0", "wq1", "wq2"] + stream[:nstart]: slot_busy[tiles[nm]['slot']] = nm
    def schedule_dma(curfrag, g):
        for sl, nm in list(slot_busy.items()):
            if last_use[nm] < curfrag: del slot_busy[sl]
        while state['next_wq'] < 14 and tiles[f"wq{state['next_wq']}"]['slot'] not in slot_busy:
            nm = f"wq{state['next_wq']}"; slot_busy[tiles[nm]['slot']] = nm
            for i in dma_tile(nm): QD.append(([i], g, None))
            state['next_wq'] += 1
            if state['next_x'] < 14:
                for i in xload(state['next_x']): QD.append(([i], g, None))
                state['next_x'] += 1
        issued = 0
        while state['next_stream'] < len(stream):
            nm = stream[state['next_stream']]
            sl = tiles[nm]['slot']
            if sl in slot_busy: break
            if sl >= 6 and state['next_wq'] < 14: break
            if state['next_wq'] < 14 and issued >= 1: break
            if nm.startswith('wo') and not state['wo_setup_done']:
                for i in wo_setup: QD.append(([i], g, None))
                state['wo_setup_done'] = True
            slot_busy[sl] = nm
            for i in dma_tile(nm): QD.append(([i], g, None))
            state['next_stream'] += 1; issued += 1
    def sync_for(n, curfrag, g):
        need = [t for t in F[n]['tiles'] if t not in synced]
        if not need: return
        while any(any(i.tag in need for i in it[0]) for it in QD):
            e(QD.pop(0)[0])
        e(wait_tags(*need)); e(raw("s_barrier"))
        synced.update(need)
        schedule_dma(curfrag, g)
    bufof = {n: AB[i % NB] for i, n in enumerate(RF)}
    for i in range(D):
        sync_for(RF[i], 0, -1)
        e(F[RF[i]]['rd'](bufof[RF[i]]))
    e(G.stamp())
    stamp_at = {segstart[s]: 1 for s in ("QK0", "PV15", "P3_0_0", "P3_3_0")}
    for n, f in enumerate(F):
        if n in stamp_at: e(G.stamp())
        mfs = f['mf'](bufof.get(n))
        pend = []
        if f['rd'] is not None and rpos[n] + D < len(RF):
            nn = RF[rpos[n] + D]
            sync_for(nn, n, 3*n - 1)
            pend = F[nn]['rd'](bufof[nn])
        for j, m in enumerate(mfs):
            gi = 3*n + j
            while any(it[2] is not None and it[2] <= gi for it in QV):
                e(QV.pop(0)[0])
            if not OPT['nocompute']: e(m)
            cap = 2
            while pend and cap > 0:
                i = pend.pop(0); e(i); cap -= 1
                if i.kind == 'ds' and j < 2: break
            if j == 2:
                while pend: e(pend.pop(0)); cap -= 1
            while cap > 0:
                if QD and QD[0][1] <= gi and (gi % 3 == 2 or not (QV and QV[0][1] <= gi)):
                    it = QD.pop(0)
                elif QV and QV[0][1] <= gi:
                    it = QV.pop(0)
                else: break
                e(it[0]); cap -= sum(i.cost for i in it[0])
    while QV: e(QV.pop(0)[0])
    assert not QD
    e(G.stamp())
    if OPT['stamps']:
        e(wait_all_vm())
        e(G.stamp())
        e(valu('v_mov_b32', V(1), 0))
        for k in range(2*G.nstamp):
            e(raw(f"v_writelane_b32 v1, s{STAMP0+k}, {k}", 'valu', [], R('v', 1)))
        e(salu('s_lshl_b32', s_t0, S(2), 2), salu('s_add_u32', s_t0, s_t0, s_w), salu('s_lshl_b32', s_t0, s_t0, 8))
        e(valu('v_and_b32', V(2), 63, V(0)), valu('v_lshlrev_b32', V(2), 2, V(2)), valu('v_add_u32', V(2), s_t0, V(2)))
        e(buf_store(V(1), V(2), sDBG, 0, n=1))
    e(label("L_end"), raw("s_endpgm"))
    stats = {}
    main = finalize(G.st, stats)
    R_ = [label("L_rescale"), fence_states(10)]
    R_ += xlane_max()
    al = vD
    for qt in range(3): R_.append(valu('v_max_f32', vTM[qt], vTM[qt], vM[qt]))
    for qt in range(3): R_.append(valu('v_mul_f32', vNM[qt], s_c, vTM[qt]))
    for qt in range(3): R_.append(valu('v_sub_f32', vNM[qt], 0, vNM[qt]))
    for qt in range(3): R_.append(valu('v_fma_f32', al[qt], vM[qt], s_c, vNM[qt]))
    for qt in range(3): R_.append(valu('v_exp_f32', al[qt], al[qt]))
    for qt in range(3): R_.append(valu('v_mov_b32', vM[qt], vTM[qt]))
    accs = [(Oacc(dt, qt), qt) for dt in range(16) for qt in range(3)] + [(Lacc(qt), qt) for qt in range(3)]
    for k, (a, qt) in enumerate(accs):
        t = CT[k % 4]
        R_ += [valu('v_accvgpr_read_b32', t[r], a[r]) for r in range(4)]
        R_ += [valu('v_mul_f32', t[r], t[r], al[qt]) for r in range(4)]
        R_ += [valu('v_accvgpr_write_b32', a[r], t[r]) for r in range(4)]
    R_ += [fence_states(3), raw(f"s_setpc_b64 {s_ret}")]
    sub = finalize(R_)
    sys.stderr.write(f"main: {stats}\n")
    return main + sub

def gen_reduce():
    L = []
    e = lambda *x: L.extend(sum([i if isinstance(i, list) else [i] for i in x], []))
    NU = 2688
    e(raw("s_cmp_ge_u32 s2, 672"), raw("s_cbranch_scc1 L_rend"))
    e(raw("s_load_dwordx2 s[4:5], s[0:1], 40"), raw("s_load_dwordx2 s[6:7], s[0:1], 56"))
    e(valu('v_lshrrev_b32', V(1), 6, V(0)), valu('v_and_b32', V(2), 63, V(0)))
    e(valu('v_readfirstlane_b32', S(20), V(1)))
    e(salu('s_lshl_b32', S(21), S(2), 2), salu('s_add_u32', S(21), S(21), S(20)))
    e(salu('s_lshl_b32', S(22), S(21), 14))
    e(valu('v_lshlrev_b32', V(3), 4, V(2)), valu('v_add_u32', V(3), S(22), V(3)))
    e(salu('s_mov_b32', S(30), 4096), salu('s_mov_b32', S(31), 8192), salu('s_mov_b32', S(32), 12288))
    e(wait_all_lgkm())
    e(srd(S(8,4), S(6), S(7), NU*16384)); e(srd(S(12,4), S(4), S(5), 16*192*448*2))
    for h in range(16):
        e(buf_load(V(16+4*h, 4), V(3), S(8,4), [0, S(30), S(31), S(32)][h >> 2], (h & 3)*1024))
    m42 = (1 << 20)//42 + 1
    assert all((u*m42) >> 20 == u//42 for u in range(NU))
    assert all((u*43) >> 7 == u//3 for u in range(42))
    e(salu('s_mul_i32', S(23), S(21), m42), salu('s_lshr_b32', S(23), S(23), 20))
    e(salu('s_mul_i32', S(24), S(23), 42), salu('s_sub_u32', S(24), S(21), S(24)))
    e(salu('s_mul_i32', S(25), S(24), 43), salu('s_lshr_b32', S(25), S(25), 7))
    e(salu('s_mul_i32', S(26), S(25), 3), salu('s_sub_u32', S(26), S(24), S(26)))
    e(salu('s_mul_i32', S(27), S(23), 48), salu('s_lshl_b32', S(28), S(26), 4), salu('s_add_u32', S(27), S(27), S(28)))
    e(salu('s_mul_i32', S(27), S(27), 896), salu('s_lshl_b32', S(28), S(25), 6), salu('s_add_u32', S(27), S(27), S(28)))
    e(valu('v_and_b32', V(4), 15, V(2)), valu('v_mul_u32_u24', V(4), 896, V(4)))
    e(valu('v_lshrrev_b32', V(5), 4, V(2)), valu('v_lshlrev_b32', V(5), 4, V(5)), valu('v_add3_u32', V(4), V(4), V(5), S(27)))
    e(salu('s_mov_b32', S(33), '0xffff0000'))
    acc = [V(8+i) for i in range(8)]
    for h in range(16):
        for k in range(4):
            x = V(16+4*h+k)
            if h == 0:
                e(valu('v_lshlrev_b32', acc[2*k], 16, x), valu('v_and_b32', acc[2*k+1], S(33), x))
            else:
                e(valu('v_lshlrev_b32', V(6), 16, x), valu('v_and_b32', V(7), S(33), x))
                e(valu('v_add_f32', acc[2*k], acc[2*k], V(6)), valu('v_add_f32', acc[2*k+1], acc[2*k+1], V(7)))
    o = V(16, 4)
    for k in range(4): e(valu('v_cvt_pk_bf16_f32', o[k], acc[2*k], acc[2*k+1]))
    e(valu('v_permlane32_swap_b32', o[0], o[2]), valu('v_permlane32_swap_b32', o[1], o[3]))
    e(valu('v_permlane16_swap_b32', o[0], o[2]), valu('v_permlane16_swap_b32', o[1], o[3]))
    e(buf_store(o, V(4), S(12,4), 0))
    e(label("L_rend"), raw("s_endpgm"))
    return finalize(L)

def kd(name, vgpr, acc, sgpr=102):
    return f""".amdhsa_kernel {name}
  .amdhsa_next_free_vgpr {vgpr}
  .amdhsa_next_free_sgpr {sgpr}
  .amdhsa_accum_offset {acc}
  .amdhsa_group_segment_fixed_size 0
  .amdhsa_kernarg_size 64
  .amdhsa_user_sgpr_count 2
  .amdhsa_user_sgpr_kernarg_segment_ptr 1
  .amdhsa_system_sgpr_workgroup_id_x 1
.end_amdhsa_kernel
"""

def main():
    out = sys.argv[1]
    L = []
    L.append(f"; @launch kernel={KNAME} grid=(256,1,1) block=(256,1,1) lds={NSLOT*SLOT}")
    L.append(f"; @launch kernel={RNAME} grid=(672,1,1) block=(256,1,1) lds=0")
    L.append('.amdgcn_target "amdgcn-amd-amdhsa--gfx950"')
    L.append(".text")
    for name, body in ((KNAME, gen_main()), (RNAME, gen_reduce())):
        L += [f".globl {name}", ".p2align 8", f".type {name},@function", f"{name}:"]
        L += body
    L += ["s_nop 0"]*64
    L.append("L_textend:")
    L.append('.section .rodata,"a"')
    L.append(".p2align 6")
    L.append(kd(KNAME, 512, 256))
    L.append(".p2align 6")
    L.append(kd(RNAME, 80, 80, 48))
    open(out, "w").write("\n".join(L) + "\n")
main()
```

```python
import sys, struct, math
from asmlib import *

OPT = dict(stamps=False, allcyc=False, D=4, warm=True, nocompute=False, kv_nt=True, T=8.0, k_start=3)
for a in sys.argv[2:]:
    k, v = a.split('=')
    OPT[k] = type(OPT[k])(eval(v))

KNAME = "standalone__mha_block_cached__near_ridge_kernel"
RNAME = "mha_reduce_kernel"
SLOT = 16384
NSLOT = 10
def f2u(x): return struct.unpack('<I', struct.pack('<f', x))[0]
CSC = math.log2(math.e) / 16.0

sX, sK, sV, sWQ, sWO, sWS = S(20,4), S(24,4), S(28,4), S(32,4), S(36,4), S(40,4)
sDBG = S(44,4)
s_w4096, s_soff, s_c, s_T, s_x1, s_x2, s_soff2, s_b, s_h, s_w = [S(i) for i in range(48, 58)]
s_ret = S(58,2)
s_t0, s_t1 = S(60), S(61)
s_pc = S(62,2)
STAMP0 = 64

vKA = [V(4+i) for i in range(4)]
vVA = [V(8+i) for i in range(8)]
vKVd = [V(16+i) for i in range(4)]
vWQd = [V(20+i) for i in range(4)]
vWOd = vWQd
vXo = V(24)
vWSo = V(24)
vM = [V(25+i) for i in range(3)]
vNM = [V(28+i) for i in range(3)]
vT = V(31)
QA = 32
def grp_lo(i): return V(QA + 8*i, 4)
def grp_hi(i): return V(QA + 8*i + 4, 4)
def grp(i): return V(QA + 8*i, 8)
NB = OPT['D'] + 1
AB = [V(224 + 4*i, 4) for i in range(NB)]
assert 224 + 4*NB <= 244
vWQA = [V(244+i) for i in range(8)]
vWOA = [V(252+i) for i in range(4)]
def Qacc(dt, qt): return V(QA + 8*((dt>>1)*3+qt) + 4*(dt&1), 4)
def QF(p, qt): return grp_lo(p*3+qt)
def Sreg(buf, kt, qt): return grp_hi(buf*6 + kt*3 + qt)
def Preg(qt): return grp_hi(12+qt)
vTM = [grp_hi(15)[i] for i in range(3)]
vD = [grp_hi(16)[i] for i in range(4)]
vRL = [V(244+i) for i in range(3)]
CT = [V(QA + 8*17 + 4, 4), V(QA + 8*18 + 4, 4), V(QA + 8*19 + 4, 4), V(QA + 8*20 + 4, 4)]
def SD(qt): return grp_hi(21+qt)
def Acc3(st, ntl, qt): return grp_hi(st*6 + ntl*3 + qt)
def Oacc(dt, qt): return A((dt*3+qt)*4, 4)
def Xf(ks, qt): return A((ks*3+qt)*4, 4)
def Lacc(qt): return A(192 + 4*qt, 4)
aONES = A(204, 4)

STAMPNAMES = []
class Gen:
    def __init__(self):
        self.st = []
        self.nstamp = 0
        self.names = []
    def e(self, *ins):
        for i in ins:
            if isinstance(i, list): self.st += i
            else: self.st.append(i)
    def stamp(self, name="", cyc=False):
        if not OPT['stamps']: return []
        k = self.nstamp; self.nstamp += 1
        assert k < 18
        self.names.append(name)
        op = "s_memtime" if (cyc or OPT['allcyc']) else "s_memrealtime"
        return [raw(f"{op} s[{STAMP0+2*k}:{STAMP0+2*k+1}]"), wait_all_lgkm()]

def srd(dst, lo, hi, nrec):
    return [salu('s_mov_b32', dst[0], lo), salu('s_and_b32', dst[1], hi, '0xffff'),
            salu('s_mov_b32', dst[2], nrec), salu('s_mov_b32', dst[3], '0x20000')]

def add64(dlo, dhi, lo, hi, off):
    return [salu('s_add_u32', dlo, lo, off), salu('s_addc_u32', dhi, hi, 0)]

def gen_main():
    G = Gen(); e = G.e
    D = OPT['D']
    e(raw("s_cmp_ge_u32 s2, 256"), raw("s_cbranch_scc1 L_end"))
    e(G.stamp("start")); e(G.stamp("cyc0", True))
    e(raw("s_load_dwordx16 s[4:19], s[0:1], 0"))
    e(raw(f"s_getpc_b64 {s_pc}", 'salu', [], s_pc.regs()), label("L_pc"))
    v1, v2, v3 = V(1), V(2), V(3)
    lane, i16, g, rp, c4, hsw = V(232), V(233), V(234), V(235), V(236), V(237)
    l5, p32 = V(238), V(239)
    e(valu('v_lshrrev_b32', v1, 6, V(0)))
    e(valu('v_and_b32', lane, 63, V(0)))
    e(valu('v_readfirstlane_b32', s_w, v1))
    e(valu('v_and_b32', i16, 15, lane), valu('v_lshrrev_b32', g, 4, lane))
    e(valu('v_bfe_u32', rp, lane, 2, 2), valu('v_and_b32', c4, 3, lane), valu('v_bfe_u32', hsw, lane, 2, 3))
    e(valu('v_lshrrev_b32', l5, 5, lane), valu('v_and_b32', p32, 31, lane))
    e(salu('s_and_b32', s_t0, S(2), 1), salu('s_lshl_b32', s_t0, s_t0, 3))
    e(salu('s_lshr_b32', s_t1, S(2), 3), salu('s_and_b32', s_t1, s_t1, 7), salu('s_add_u32', s_b, s_t0, s_t1))
    e(salu('s_and_b32', s_t0, S(2), 6), salu('s_lshl_b32', s_t0, s_t0, 1))
    e(salu('s_lshr_b32', s_t1, S(2), 6), salu('s_add_u32', s_h, s_t0, s_t1))
    e(salu('s_lshl_b32', s_w4096, s_w, 12))
    e(salu('s_mov_b32', s_c, hex(f2u(CSC))), salu('s_mov_b32', s_T, hex(f2u(OPT['T']))))
    e(salu('s_mov_b32', s_x1, 16*896), salu('s_mov_b32', s_x2, 32*896))
    e(salu('s_and_b32', s_t0, s_w, 1), salu('s_lshl_b32', s_t0, s_t0, 3))
    e(salu('s_lshl_b32', s_t1, s_w, 16))
    for jj in range(4):
        e(valu('v_lshlrev_b32', v1, 1, l5))
        e(valu('v_add_u32', v1, ((2*jj) & 3) << 1, v1))
        e(valu('v_or_b32', v1, s_t0, v1))
        e(valu('v_xor_b32', v1, v1, p32))
        e(valu('v_lshlrev_b32', v1, 4, v1))
        e(valu('v_lshlrev_b32', v2, 13, l5))
        e(valu('v_add3_u32', v1, v1, v2, s_t1))
        e(valu('v_add_u32', vWQd[jj], 2*jj*8192 - jj*1024, v1))
    e(salu('s_mul_i32', s_t0, s_w, 48*896))
    e(valu('v_mul_u32_u24', v1, 896, i16), valu('v_lshlrev_b32', v2, 4, g), valu('v_add3_u32', vXo, v1, v2, s_t0))
    for jj in range(4):
        e(valu('v_lshlrev_b32', v1, 1, l5))
        e(valu('v_add_u32', v1, (2*jj) << 1, v1))
        e(valu('v_xor_b32', v1, v1, p32))
        e(valu('v_lshlrev_b32', v1, 4, v1))
        e(valu('v_lshlrev_b32', v2, 9, l5))
        e(valu('v_add3_u32', vKVd[jj], v1, v2, s_w4096))
    e(wait_all_lgkm())
    e(salu('s_mul_i32', s_t0, s_b, 172032)); e(add64(S(4), S(5), S(4), S(5), s_t0)); e(srd(sX, S(4), S(5), 172032))
    e(salu('s_lshl_b32', s_t0, s_h, 9)); e(add64(S(10), S(11), S(10), S(11), s_t0))
    e(srd(sWQ, S(10), S(11), 448*8192)); e(salu('s_sub_u32', sWQ[2], sWQ[2], s_t0))
    e(salu('s_lshl_b32', s_t0, s_b, 4), salu('s_add_u32', s_t0, s_t0, s_h), salu('s_lshl_b32', s_t0, s_t0, 18))
    e(add64(S(6), S(7), S(6), S(7), s_t0)); e(srd(sK, S(6), S(7), 262144))
    e(add64(S(8), S(9), S(8), S(9), s_t0)); e(srd(sV, S(8), S(9), 262144))

    kvflag = " nt" if OPT['kv_nt'] else ""
    def dma_tile(name):
        t = tiles[name]
        ins = [salu('s_add_u32', 'm0', s_w4096, t['slot']*SLOT), salu('s_mov_b32', s_soff, t['soff'])]
        for jj in range(4):
            ins.append(buf_dma(t['voff'][jj], t['srd'], s_soff, jj*1024, name, flags=t.get('flags', "")))
        return ins
    tiles = {}
    for j in range(14):
        tiles[f"wq{j}"] = dict(srd=sWQ, soff=j*32*8192, voff=vWQd, slot=6 + ((j+2) % 4))
    stream = ["K0"]
    for t in range(15): stream += [f"K{t+1}", f"V{t}"]
    stream += ["V15"]
    stream += [f"wo{v}" for v in range(14)]
    for u, name in enumerate(stream):
        if name[0] == 'K': tiles[name] = dict(srd=sK, soff=int(name[1:])*SLOT, voff=vKVd, flags=kvflag)
        elif name[0] == 'V': tiles[name] = dict(srd=sV, soff=int(name[1:])*SLOT, voff=vKVd, flags=kvflag)
        else:
            v = int(name[2:]); tiles[name] = dict(srd=sWO, soff=(v & 1)*128*896 + (v >> 1)*128, voff=vWOd)
        tiles[name]['slot'] = u % NSLOT
    def xload(ks):
        return [buf_load(Xf(ks, qt), vXo, sX, [0, s_x1, s_x2][qt], ks*64) for qt in range(3)]

    e(dma_tile("wq0")); e(xload(0)); e(dma_tile("wq1")); e(xload(1)); e(dma_tile("wq2")); e(xload(2))
    if OPT['warm']:
        e(salu('s_lshr_b32', s_t0, S(2), 3), salu('s_and_b32', s_t0, s_t0, 1), salu('s_lshl_b32', s_t0, s_t0, 2),
          salu('s_add_u32', s_t0, s_t0, s_w), salu('s_lshl_b32', s_t0, s_t0, 13))
        e(valu('v_lshlrev_b32', v1, 7, lane), valu('v_add_u32', v1, s_t0, v1))
        e(valu('v_min_u32', v1, 'L_textend-L_pc-4', v1))
        e(I(f"global_load_dword v3, v1, {s_pc}", 'vmem', fl([v1, s_pc]), fl([v3])))
    e(xload(3)); e(xload(4))
    nstart = OPT['k_start']
    for u in range(nstart): e(dma_tile(stream[u]))
    next_stream = nstart
    e(salu('s_mul_i32', s_t0, s_h, 229376)); e(add64(S(12), S(13), S(12), S(13), s_t0)); e(srd(sWO, S(12), S(13), 229376))
    e(salu('s_mul_i32', s_t0, s_b, 168*16384), salu('s_lshl_b32', s_t1, s_h, 10), salu('s_add_u32', s_t0, s_t0, s_t1))
    if OPT['stamps']:
        e(add64(S(16), S(17), S(18), S(19), 64 << 20)); e(srd(sDBG, S(16), S(17), 1 << 20))
    e(add64(S(18), S(19), S(18), S(19), s_t0)); e(srd(sWS, S(18), S(19), 168*16384)); e(salu('s_sub_u32', sWS[2], sWS[2], s_t1))
    for m in range(4):
        e(valu('v_and_b32', v1, 7, i16), valu('v_lshlrev_b32', v1, 1, v1))
        e(valu('v_or_b32', v2, m << 2, g), valu('v_xor_b32', v1, v1, v2), valu('v_lshlrev_b32', v1, 4, v1))
        e(valu('v_lshl_add_u32', vKA[m], i16, 9, v1))
    for s7 in range(8):
        e(valu('v_xor_b32', v1, s7, hsw), valu('v_lshlrev_b32', v1, 5, v1), valu('v_lshl_add_u32', v1, c4, 3, v1))
        e(valu('v_lshl_add_u32', v1, rp, 9, v1))
        e(valu('v_lshl_add_u32', vVA[s7], g, 11, v1))
        e(valu('v_lshl_add_u32', v1, g, 12, v1), valu('v_add_u32', vWQA[s7], 6*SLOT, v1))
    for s4 in range(4):
        e(valu('v_bfe_u32', v1, lane, 3, 2), valu('v_xor_b32', v1, s4, v1), valu('v_lshlrev_b32', v1, 5, v1))
        e(valu('v_lshl_add_u32', v1, c4, 3, v1))
        e(valu('v_lshrrev_b32', v2, 2, lane), valu('v_lshl_add_u32', vWOA[s4], v2, 7, v1))
    e(valu('v_mov_b32', v1, '0x3f803f80'))
    for i in range(4): e(valu('v_accvgpr_write_b32', aONES[i], v1))
    e(G.stamp("setup"))

    win = {'K': 0, 'V': 0, 'WO': 0, 'WQ': 6*SLOT}
    aset = {'K': vKA, 'V': vVA, 'WO': vWOA, 'WQ': vWQA}
    def lds_off(kind, slot, inner, pre):
        a = slot*SLOT + inner
        if not (0 <= slot*SLOT - win[kind] and slot*SLOT + SLOT - win[kind] <= 65536):
            nb = (slot*SLOT) & ~0xffff
            d = nb - win[kind]
            for r in aset[kind]:
                pre.append(valu('v_add_u32', r, d & 0xffffffff, r))
            win[kind] = nb
        return a - win[kind]

    F = []
    def rd_tr(kind, tile, aidx, off0, off1):
        def f(buf):
            pre = []
            o0 = lds_off(kind, tiles[tile]['slot'], off0, pre)
            o1 = lds_off(kind, tiles[tile]['slot'], off1, pre)
            a = aset[kind][aidx]
            return pre + [ds_read('ds_read_b64_tr_b16', buf.sub(0, 2), a, o0), ds_read('ds_read_b64_tr_b16', buf.sub(2, 2), a, o1)]
        return f
    def rd_128(kind, tile, aidx, off):
        def f(buf):
            pre = []
            o = lds_off(kind, tiles[tile]['slot'], off, pre)
            return pre + [ds_read('ds_read_b128', buf, aset[kind][aidx], o)]
        return f
    segstart = {}
    def seg(name): segstart[name] = len(F)
    for ks in range(14):
        seg(f"P1_{ks}")
        for dt in range(16):
            F.append(dict(rd=rd_tr('WQ', f"wq{ks}", dt & 7, (dt >> 3)*256, (dt >> 3)*256 + 2048), tiles=[f"wq{ks}"],
                          mf=(lambda buf, ks=ks, dt=dt: [mfma(Qacc(dt, qt), buf, Xf(ks, qt), Qacc(dt, qt) if ks else 0) for qt in range(3)])))
    def qk_seg(t):
        seg(f"QK{t}")
        for ks in range(8):
            for kt in range(2):
                F.append(dict(rd=rd_128('K', f"K{t}", ks & 3, (ks >> 2)*256 + kt*8192), tiles=[f"K{t}"],
                              mf=(lambda buf, ks=ks, kt=kt, t=t: [mfma(Sreg(t & 1, kt, qt), buf, QF(ks, qt), Sreg(t & 1, kt, qt) if ks else 0) for qt in range(3)])))
    def pv_seg(t):
        seg(f"PV{t}")
        F.append(dict(rd=None, tiles=[], mf=(lambda buf, t=t: [mfma(Lacc(qt), aONES, Preg(qt), Lacc(qt) if t else 0) for qt in range(3)])))
        for dt in range(16):
            F.append(dict(rd=rd_tr('V', f"V{t}", dt & 7, (dt >> 3)*256, (dt >> 3)*256 + 8192), tiles=[f"V{t}"],
                          mf=(lambda buf, dt=dt, t=t: [mfma(Oacc(dt, qt), buf, Preg(qt), Oacc(dt, qt) if t else 0) for qt in range(3)])))
    qk_seg(0)
    for t in range(15):
        qk_seg(t+1); pv_seg(t)
    pv_seg(15)
    for n7 in range(7):
        for st in range(2):
            seg(f"P3_{n7}_{st}")
            for ks in range(8):
                for ntl in range(2):
                    tl = f"wo{2*n7 + (ks >> 2)}"
                    F.append(dict(rd=rd_tr('WO', tl, st*2 + ntl, (ks & 3)*4096, (ks & 3)*4096 + 2048), tiles=[f"wo{2*n7}", f"wo{2*n7+1}"],
                                  mf=(lambda buf, ks=ks, ntl=ntl, st=st: [mfma(Acc3(st, ntl, qt), buf, QF(ks, qt), Acc3(st, ntl, qt) if ks else 0) for qt in range(3)])))
    seg("END")
    NF = len(F)
    def gap(segname, fragoff=0, j=0):
        return (segstart[segname] + fragoff)*3 + j
    last_use = {}
    for n, f in enumerate(F):
        for t in f['tiles']: last_use[t] = n

    QV = []
    QD = []
    def qv(ins, ear, dl):
        for i in ins: QV.append(([i] if not isinstance(i, list) else i, ear, dl))
    for p in range(8):
        ins = []
        for qt in range(3):
            gq = grp(p*3+qt)
            for k in range(4): ins.append(valu('v_cvt_pk_bf16_f32', gq[k], gq[2*k], gq[2*k+1]))
        for qt in range(3):
            gq = grp(p*3+qt)
            ins += [valu('v_permlane32_swap_b32', gq[0], gq[2]), valu('v_permlane32_swap_b32', gq[1], gq[3])]
        for qt in range(3):
            gq = grp(p*3+qt)
            ins += [valu('v_permlane16_swap_b32', gq[0], gq[2]), valu('v_permlane16_swap_b32', gq[1], gq[3])]
        qv(ins, gap("P1_13", 2*p+1, 2) + 4, gap("QK0", max(0, 2*p-1)))
    def tmax_ins(t):
        ins = []
        for step in range(4):
            for qt in range(3):
                s = [Sreg(t & 1, kt, qt)[r] for kt in range(2) for r in range(4)]
                if step == 0: ins.append(valu('v_max3_f32', vTM[qt], s[0], s[1], s[2]))
                elif step < 3: ins.append(valu('v_max3_f32', vTM[qt], vTM[qt], s[2*step+1], s[2*step+2]))
                else: ins.append(valu('v_max_f32', vTM[qt], vTM[qt], s[7]))
        return ins
    def xlane_max():
        ins = []
        for op in ('v_permlane32_swap_b32', 'v_permlane16_swap_b32'):
            for qt in range(3): ins.append(valu('v_mov_b32', vD[qt], vTM[qt]))
            for qt in range(3): ins.append(valu(op, vD[qt], vTM[qt]))
            for qt in range(3): ins.append(valu('v_max_f32', vTM[qt], vTM[qt], vD[qt]))
        return ins
    def exp_ins(t):
        ins = []
        batches = [(qt, kt) for qt in range(3) for kt in range(2)]
        prev = None
        for (qt, kt) in batches:
            s = Sreg(t & 1, kt, qt)
            for r in range(4): ins.append(valu('v_fma_f32', s[r], s[r], s_c, vNM[qt]))
            if prev: ins += prev
            for r in range(4): ins.append(valu('v_exp_f32', s[r], s[r]))
            prev = [valu('v_cvt_pk_bf16_f32', Preg(qt)[2*kt + k], s[2*k], s[2*k+1]) for k in range(2)]
        ins += prev
        return ins
    ins = tmax_ins(0) + xlane_max()
    for qt in range(3): ins += [valu('v_mov_b32', vM[qt], vTM[qt]), valu('v_mul_f32', vNM[qt], s_c, vTM[qt])]
    for qt in range(3): ins += [valu('v_sub_f32', vNM[qt], 0, vNM[qt])]
    qv(ins, gap("QK1") + 3, gap("PV0"))
    for t in range(16):
        ear = gap(f"QK{t+1}") - 1 if t < 15 else gap("PV15") - 1
        qv(exp_ins(t), ear, gap(f"PV{t}"))
        if t < 15:
            nxt = f"QK{t+2}" if t < 14 else "PV15"
            ins = tmax_ins(t+1)
            for qt in range(3): ins.append(valu('v_fma_f32', vD[qt], vTM[qt], s_c, vNM[qt]))
            ins.append(valu('v_max3_f32', vD[3], vD[0], vD[1], vD[2]))
            ins.append(valu('v_cmp_lt_f32', 'vcc', s_T, vD[3]))
            qv(ins, gap(f"PV{t}") + 3, gap(nxt))
            blk = [raw(f"s_cbranch_vccz L_skip{t}"), raw(f"s_call_b64 {s_ret}, L_rescale"), label(f"L_skip{t}")]
            if t in (3, 7, 11): blk += G.stamp(f'endPV{t}')
            QV.append((blk, gap(nxt) - 1, gap(nxt)))
    lane2 = vD
    t0, t1 = V(1), V(2)
    ins = [valu('v_and_b32', V(3), 63, V(0))]
    ins += [valu('v_lshrrev_b32', t0, 3, V(3)),
            valu('v_bfe_u32', t1, V(3), 4, 2), valu('v_lshlrev_b32', t1, 1, t1),
            valu('v_and_b32', vT, 7, V(3)), valu('v_xor_b32', t1, t1, vT), valu('v_lshlrev_b32', t1, 4, t1),
            valu('v_mul_u32_u24', t0, 896, t0), salu('s_mul_i32', s_t0, s_w, 32*896), valu('v_add3_u32', t0, t0, t1, s_t0)]
    for jj in range(4): ins.append(valu('v_add_u32', vWOd[jj], jj*(8*896 - 1024), t0))
    ins += [salu('s_mul_i32', s_t0, s_w, 42*16384), valu('v_lshlrev_b32', t0, 4, V(3)), valu('v_add_u32', vWSo, s_t0, t0)]
    wo_setup = ins
    ins = []
    for qt in range(3): ins.append(valu('v_accvgpr_read_b32', vRL[qt], Lacc(qt)[0]))
    for qt in range(3): ins.append(valu('v_rcp_f32', vRL[qt], vRL[qt]))
    qv(ins, gap("PV15", 0, 2) + 4, gap("P3_0_0"))
    cti = 0
    for ks in range(8):
        for qt in range(3):
            ta, tb = CT[cti % 4], CT[(cti+1) % 4]; cti += 2
            ins = [valu('v_accvgpr_read_b32', ta[r], Oacc(2*ks, qt)[r]) for r in range(4)]
            ins += [valu('v_accvgpr_read_b32', tb[r], Oacc(2*ks+1, qt)[r]) for r in range(4)]
            of = QF(ks, qt)
            ins += [valu('v_cvt_pk_bf16_f32', of[0], ta[0], ta[1]), valu('v_cvt_pk_bf16_f32', of[1], ta[2], ta[3]),
                    valu('v_cvt_pk_bf16_f32', of[2], tb[0], tb[1]), valu('v_cvt_pk_bf16_f32', of[3], tb[2], tb[3])]
            qv(ins, gap("PV15", 1 + 2*ks + 1, 2) + 4, gap("P3_0_0", 2*ks))
    p3segs = [f"P3_{n7}_{st}" for n7 in range(7) for st in range(2)] + ["END", "END"]
    for i in range(14):
        n7, st = i >> 1, i & 1
        ins = []
        for qt in range(3):
            for ntl in range(2):
                a = Acc3(st, ntl, qt)
                for r in range(4): ins.append(valu('v_mul_f32', a[r], a[r], vRL[qt]))
            for ntl in range(2):
                a = Acc3(st, ntl, qt)
                for k in range(2): ins.append(valu('v_cvt_pk_bf16_f32', SD(qt)[2*ntl + k], a[2*k], a[2*k+1]))
            ins.append([salu('s_mov_b32', s_soff2, (i*3 + qt)*16384), buf_store(SD(qt), vWSo, sWS, s_soff2)])
        qv(ins, gap(p3segs[i+1]) + 3 if i < 13 else gap("END"), gap(p3segs[i+2]) if i < 12 else gap("END") + 10)

    RF = [n for n, f in enumerate(F) if f['rd'] is not None]
    rpos = {n: i for i, n in enumerate(RF)}
    synced = set()
    freed = set()
    state = dict(next_stream=next_stream, next_wq=3, next_x=5, wo_setup_done=False)
    slot_busy = {}
    for nm in ["wq0", "wq1", "wq2"] + stream[:nstart]: slot_busy[tiles[nm]['slot']] = nm
    def schedule_dma(curfrag, g):
        for sl, nm in list(slot_busy.items()):
            if last_use[nm] < curfrag: del slot_busy[sl]
        while state['next_wq'] < 14 and tiles[f"wq{state['next_wq']}"]['slot'] not in slot_busy:
            nm = f"wq{state['next_wq']}"; slot_busy[tiles[nm]['slot']] = nm
            for i in dma_tile(nm): QD.append(([i], g, None))
            state['next_wq'] += 1
            if state['next_x'] < 14:
                for i in xload(state['next_x']): QD.append(([i], g, None))
                state['next_x'] += 1
        issued = 0
        while state['next_stream'] < len(stream):
            nm = stream[state['next_stream']]
            sl = tiles[nm]['slot']
            if sl in slot_busy: break
            if sl >= 6 and state['next_wq'] < 14: break
            if state['next_wq'] < 14 and issued >= 1: break
            if nm.startswith('wo') and not state['wo_setup_done']:
                for i in wo_setup: QD.append(([i], g, None))
                state['wo_setup_done'] = True
            slot_busy[sl] = nm
            for i in dma_tile(nm): QD.append(([i], g, None))
            state['next_stream'] += 1; issued += 1
    def sync_for(n, curfrag, g):
        need = [t for t in F[n]['tiles'] if t not in synced]
        if not need: return
        while any(any(i.tag in need for i in it[0]) for it in QD):
            e(QD.pop(0)[0])
        e(wait_tags(*need)); e(raw("s_barrier"))
        synced.update(need)
        schedule_dma(curfrag, g)
    bufof = {n: AB[i % NB] for i, n in enumerate(RF)}
    for i in range(D):
        sync_for(RF[i], 0, -1)
        e(F[RF[i]]['rd'](bufof[RF[i]]))
    e(G.stamp("primed"))
    stamp_at = {segstart[s]: s for s in ("P1_7", "QK0", "PV15", "P3_0_0", "P3_3_0")}
    for n, f in enumerate(F):
        if n in stamp_at: e(G.stamp(stamp_at[n]))
        mfs = f['mf'](bufof.get(n))
        pend = []
        if f['rd'] is not None and rpos[n] + D < len(RF):
            nn = RF[rpos[n] + D]
            sync_for(nn, n, 3*n - 1)
            pend = F[nn]['rd'](bufof[nn])
        for j, m in enumerate(mfs):
            gi = 3*n + j
            while any(it[2] is not None and it[2] <= gi for it in QV):
                e(QV.pop(0)[0])
            if not OPT['nocompute']: e(m)
            cap = 2
            while pend and cap > 0:
                i = pend.pop(0); e(i); cap -= 1
                if i.kind == 'ds' and j < 2: break
            if j == 2:
                while pend: e(pend.pop(0)); cap -= 1
            while cap > 0:
                if QD and QD[0][1] <= gi and (gi % 3 == 2 or not (QV and QV[0][1] <= gi)):
                    it = QD.pop(0)
                elif QV and QV[0][1] <= gi:
                    it = QV.pop(0)
                else: break
                e(it[0]); cap -= sum(i.cost for i in it[0])
    while QV: e(QV.pop(0)[0])
    assert not QD
    e(G.stamp("issued"))
    if OPT['stamps']:
        e(wait_all_vm())
        e(G.stamp("drained")); e(G.stamp("cyc1", True))
        STAMPNAMES.extend(G.names)
        e(valu('v_mov_b32', V(1), 0))
        for k in range(2*G.nstamp):
            e(raw(f"v_writelane_b32 v1, s{STAMP0+k}, {k}", 'valu', [], R('v', 1)))
        e(salu('s_lshl_b32', s_t0, S(2), 2), salu('s_add_u32', s_t0, s_t0, s_w), salu('s_lshl_b32', s_t0, s_t0, 8))
        e(valu('v_and_b32', V(2), 63, V(0)), valu('v_lshlrev_b32', V(2), 2, V(2)), valu('v_add_u32', V(2), s_t0, V(2)))
        e(buf_store(V(1), V(2), sDBG, 0, n=1))
    e(label("L_end"), raw("s_endpgm"))
    stats = {}
    main = finalize(G.st, stats)
    R_ = [label("L_rescale"), fence_states(10)]
    R_ += xlane_max()
    al = vD
    for qt in range(3): R_.append(valu('v_max_f32', vTM[qt], vTM[qt], vM[qt]))
    for qt in range(3): R_.append(valu('v_mul_f32', vNM[qt], s_c, vTM[qt]))
    for qt in range(3): R_.append(valu('v_sub_f32', vNM[qt], 0, vNM[qt]))
    for qt in range(3): R_.append(valu('v_fma_f32', al[qt], vM[qt], s_c, vNM[qt]))
    for qt in range(3): R_.append(valu('v_exp_f32', al[qt], al[qt]))
    for qt in range(3): R_.append(valu('v_mov_b32', vM[qt], vTM[qt]))
    accs = [(Oacc(dt, qt), qt) for dt in range(16) for qt in range(3)] + [(Lacc(qt), qt) for qt in range(3)]
    for k, (a, qt) in enumerate(accs):
        t = CT[k % 4]
        R_ += [valu('v_accvgpr_read_b32', t[r], a[r]) for r in range(4)]
        R_ += [valu('v_mul_f32', t[r], t[r], al[qt]) for r in range(4)]
        R_ += [valu('v_accvgpr_write_b32', a[r], t[r]) for r in range(4)]
    R_ += [fence_states(3), raw(f"s_setpc_b64 {s_ret}")]
    sub = finalize(R_)
    sys.stderr.write(f"main: {stats}\n")
    return main + sub

def gen_reduce():
    L = []
    e = lambda *x: L.extend(sum([i if isinstance(i, list) else [i] for i in x], []))
    NU = 2688
    e(raw("s_cmp_ge_u32 s2, 672"), raw("s_cbranch_scc1 L_rend"))
    e(raw("s_load_dwordx2 s[4:5], s[0:1], 40"), raw("s_load_dwordx2 s[6:7], s[0:1], 56"))
    e(valu('v_lshrrev_b32', V(1), 6, V(0)), valu('v_and_b32', V(2), 63, V(0)))
    e(valu('v_readfirstlane_b32', S(20), V(1)))
    e(salu('s_lshl_b32', S(21), S(2), 2), salu('s_add_u32', S(21), S(21), S(20)))
    e(salu('s_lshl_b32', S(22), S(21), 14))
    e(valu('v_lshlrev_b32', V(3), 4, V(2)), valu('v_add_u32', V(3), S(22), V(3)))
    e(salu('s_mov_b32', S(30), 4096), salu('s_mov_b32', S(31), 8192), salu('s_mov_b32', S(32), 12288))
    e(wait_all_lgkm())
    e(srd(S(8,4), S(6), S(7), NU*16384)); e(srd(S(12,4), S(4), S(5), 16*192*448*2))
    for h in range(16):
        e(buf_load(V(16+4*h, 4), V(3), S(8,4), [0, S(30), S(31), S(32)][h >> 2], (h & 3)*1024))
    m42 = (1 << 20)//42 + 1
    assert all((u*m42) >> 20 == u//42 for u in range(NU))
    assert all((u*43) >> 7 == u//3 for u in range(42))
    e(salu('s_mul_i32', S(23), S(21), m42), salu('s_lshr_b32', S(23), S(23), 20))
    e(salu('s_mul_i32', S(24), S(23), 42), salu('s_sub_u32', S(24), S(21), S(24)))
    e(salu('s_mul_i32', S(25), S(24), 43), salu('s_lshr_b32', S(25), S(25), 7))
    e(salu('s_mul_i32', S(26), S(25), 3), salu('s_sub_u32', S(26), S(24), S(26)))
    e(salu('s_mul_i32', S(27), S(23), 48), salu('s_lshl_b32', S(28), S(26), 4), salu('s_add_u32', S(27), S(27), S(28)))
    e(salu('s_mul_i32', S(27), S(27), 896), salu('s_lshl_b32', S(28), S(25), 6), salu('s_add_u32', S(27), S(27), S(28)))
    e(valu('v_and_b32', V(4), 15, V(2)), valu('v_mul_u32_u24', V(4), 896, V(4)))
    e(valu('v_lshrrev_b32', V(5), 4, V(2)), valu('v_lshlrev_b32', V(5), 4, V(5)), valu('v_add3_u32', V(4), V(4), V(5), S(27)))
    e(salu('s_mov_b32', S(33), '0xffff0000'))
    acc = [V(8+i) for i in range(8)]
    for h in range(16):
        for k in range(4):
            x = V(16+4*h+k)
            if h == 0:
                e(valu('v_lshlrev_b32', acc[2*k], 16, x), valu('v_and_b32', acc[2*k+1], S(33), x))
            else:
                e(valu('v_lshlrev_b32', V(6), 16, x), valu('v_and_b32', V(7), S(33), x))
                e(valu('v_add_f32', acc[2*k], acc[2*k], V(6)), valu('v_add_f32', acc[2*k+1], acc[2*k+1], V(7)))
    o = V(16, 4)
    for k in range(4): e(valu('v_cvt_pk_bf16_f32', o[k], acc[2*k], acc[2*k+1]))
    e(valu('v_permlane32_swap_b32', o[0], o[2]), valu('v_permlane32_swap_b32', o[1], o[3]))
    e(valu('v_permlane16_swap_b32', o[0], o[2]), valu('v_permlane16_swap_b32', o[1], o[3]))
    e(buf_store(o, V(4), S(12,4), 0))
    e(label("L_rend"), raw("s_endpgm"))
    return finalize(L)

def kd(name, vgpr, acc, sgpr=102):
    return f""".amdhsa_kernel {name}
  .amdhsa_next_free_vgpr {vgpr}
  .amdhsa_next_free_sgpr {sgpr}
  .amdhsa_accum_offset {acc}
  .amdhsa_group_segment_fixed_size 0
  .amdhsa_kernarg_size 64
  .amdhsa_user_sgpr_count 2
  .amdhsa_user_sgpr_kernarg_segment_ptr 1
  .amdhsa_system_sgpr_workgroup_id_x 1
.end_amdhsa_kernel
"""

def main():
    out = sys.argv[1]
    L = []
    L.append(f"; @launch kernel={KNAME} grid=(256,1,1) block=(256,1,1) lds={NSLOT*SLOT}")
    L.append(f"; @launch kernel={RNAME} grid=(672,1,1) block=(256,1,1) lds=0")
    L.append('.amdgcn_target "amdgcn-amd-amdhsa--gfx950"')
    L.append(".text")
    for name, body in ((KNAME, gen_main()), (RNAME, gen_reduce())):
        L += [f".globl {name}", ".p2align 8", f".type {name},@function", f"{name}:"]
        L += body
    L += ["s_nop 0"]*64
    L.append("L_textend:")
    L.append("; STAMPS " + ",".join(STAMPNAMES))
    L.append("; ALLCYC %d" % OPT['allcyc'])
    L.append('.section .rodata,"a"')
    L.append(".p2align 6")
    L.append(kd(KNAME, 512, 256))
    L.append(".p2align 6")
    L.append(kd(RNAME, 80, 80, 48))
    open(out, "w").write("\n".join(L) + "\n")
main()
```
